```python
import torch

def _softmax(x, axis=-1):
    return torch.softmax(x, dim=axis)
def _gelu(x):
    return torch.nn.functional.gelu(x, approximate="tanh")
def _silu(x):
    return torch.nn.functional.silu(x)
def _sigmoid(x):
    return torch.sigmoid(x)
def _layernorm(x, axis=-1, eps=1e-5):
    m = x.mean(dim=axis, keepdim=True)
    v = x.var(dim=axis, keepdim=True, unbiased=False)
    return (x - m) / torch.sqrt(v + eps)
def _scatter_add(tgt, idx, src, axis=0):
    return tgt.clone().index_add_(axis, idx, src)
def _segment_sum(src, seg, n):
    out = torch.zeros((n,) + src.shape[1:], dtype=src.dtype)
    return out.index_add_(0, seg, src)
def _pad(x, pw):
    flat = tuple(v for pair in reversed(pw) for v in pair)
    return torch.nn.functional.pad(x, flat)

kernel_name = 'recurrent_scan__sliding_local_dilated__dense_activation_silu__prompt'

def setup_inputs():

    _w = (lambda a: (lambda t: t.to(torch.bfloat16) if t.is_floating_point() else t)(torch.as_tensor(a)))
    def _A_setup():
        B, S, D = 1, 2048, 640
        return {
            "x": _w((lambda *s: torch.randn(*s, dtype=torch.bfloat16) * 0.05)(B, S, D)),
            "wqkv": _w((lambda *s: torch.randn(*s, dtype=torch.bfloat16) * 0.2)(D, 3 * D)),
            "wo": _w((lambda *s: torch.randn(*s, dtype=torch.bfloat16) * 0.2)(D, D)),
        }
    _A_in = _A_setup()

    def _B_setup():
        B, S, D, F = 1, 2048, 640, 1536
        return {
            "x": _w((lambda *s: torch.randn(*s, dtype=torch.bfloat16) * 0.05)(B, S, D)),
            "w1": _w((lambda *s: torch.randn(*s, dtype=torch.bfloat16) * 0.8)(D, F) * (D ** -0.5)),
            "w2": _w((lambda *s: torch.randn(*s, dtype=torch.bfloat16) * 0.1)(F, D) * (F ** -0.5)),
        }
    _B_in = _B_setup()

    return {
        "A_x": _A_in["x"],
        "A_wqkv": _A_in["wqkv"],
        "A_wo": _A_in["wo"],
        "B_x": _B_in["x"],
        "B_w1": _B_in["w1"],
        "B_w2": _B_in["w2"],
    }

def reference(A_x, A_wqkv, A_wo, B_x, B_w1, B_w2):
    def _A_ref(x, wqkv, wo):
        B, S, D = x.shape
        H = 32; Dh = D // H
        W, dil = 8, 2
        qkv = (lambda x, *d: x.permute(*d))((x @ wqkv).reshape(B, S, 3, H, Dh), 2, 0, 3, 1, 4)
        q, k, v = qkv[0], qkv[1], qkv[2]
        scale = Dh ** -0.5
        pos = torch.arange(S)
        off = torch.arange(W) * dil
        idx = pos[:, None] - off[None, :]
        mask = idx >= 0
        idx_c = torch.where(mask, idx, 0).reshape(-1)
        kg = k[:, :, idx_c, :].reshape(B, H, S, W, Dh)
        vg = v[:, :, idx_c, :].reshape(B, H, S, W, Dh)
        logits = torch.einsum("bhsd,bhswd->bhsw", q, kg) * scale
        logits = torch.where(mask[None, None, :, :], logits, -1e9)
        attn = _softmax(logits, axis=-1)
        o = torch.einsum("bhsw,bhswd->bhsd", attn, vg)
        return (lambda x, *d: x.permute(*d))(o, 0, 2, 1, 3).reshape(B, S, D) @ wo

    def _B_ref(x, w1, w2):
        h = torch.einsum("bsd,df->bsf", x, w1)
        h = _silu(h)
        out = torch.einsum("bsf,fd->bsd", h, w2)
        return out

    x = A_x
    xn = _layernorm(x, axis=-1)
    s = _A_ref(xn, A_wqkv, A_wo)
    g = _silu(_B_ref(xn, B_w1, B_w2))
    return x + s * g
```

```python
class Asm:
    def __init__(self):
        self.lines = []
        self._lbl = 0
    def __call__(self, s=""):
        for l in s.split("\n"):
            self.lines.append(l)
    def e(self, s):
        self.lines.append("    " + s)
    def label(self, name):
        self.lines.append(name + ":")
    def newlabel(self, base="L"):
        self._lbl += 1
        return f"{base}_{self._lbl}"
    def text(self):
        return "\n".join(self.lines) + "\n"

def kernel_begin(a, name):
    a(".text")
    a(f".globl {name}")
    a(".p2align 8")
    a(f".type {name},@function")
    a(f"{name}:")

def kernel_desc(a, name, vgpr, sgpr=102, accum=None, wg_y=False, extra=()):
    if accum is None:
        accum = (vgpr + 3) // 4 * 4
    a('.section .rodata,"a"')
    a(".p2align 6")
    a(f".amdhsa_kernel {name}")
    a(f"  .amdhsa_next_free_vgpr {vgpr}")
    a(f"  .amdhsa_next_free_sgpr {sgpr}")
    a(f"  .amdhsa_accum_offset {accum}")
    a("  .amdhsa_group_segment_fixed_size 0")
    a("  .amdhsa_kernarg_size 72")
    a("  .amdhsa_user_sgpr_count 2")
    a("  .amdhsa_user_sgpr_kernarg_segment_ptr 1")
    a("  .amdhsa_system_sgpr_workgroup_id_x 1")
    if wg_y:
        a("  .amdhsa_system_sgpr_workgroup_id_y 1")
    for x in extra:
        a("  " + x)
    a(".end_amdhsa_kernel")

def srd(a, s, ptr_lo, nbytes, add=0):
    if add:
        a.e(f"s_add_u32 s{s}, s{ptr_lo}, {add}")
        a.e(f"s_addc_u32 s{s+1}, s{ptr_lo+1}, 0")
    else:
        a.e(f"s_mov_b32 s{s}, s{ptr_lo}")
        a.e(f"s_mov_b32 s{s+1}, s{ptr_lo+1}")
    a.e(f"s_mov_b32 s{s+2}, {nbytes}")
    a.e(f"s_mov_b32 s{s+3}, 0x00020000")
```

```python
import sys
from asmlib import *
NAME = "recurrent_scan__sliding_local_dilated__dense_activation_silu__prompt"
S, D, F = 2048, 640, 1536
WS_XN  = 0
WS_QKV = WS_XN + S*D*2
WS_H   = WS_QKV + S*3*D*2
WS_O   = WS_H + S*F*2
WS_S   = WS_O + S*D*2
WS_END = WS_S + S*D*2

LN_MODE = sys.argv[1] if len(sys.argv) > 1 else "mimic"
SCALE_OUT = float(sys.argv[2]) if len(sys.argv) > 2 else 0.0
EXTRA_EMPTY = int(sys.argv[3]) if len(sys.argv) > 3 else 0

a = Asm()
hdr = open("cdna_kernels/" + NAME + ".s.ref").read().split("\n")
for l in hdr:
    if l.startswith("; @launch"): break
    if l.startswith(";"): a(l)
import os
for i in range(int(os.environ.get("FRONT_EMPTY","0"))):
    a(f"; @launch kernel=empty_kernel grid=(256,1,1) block=(256,1,1) lds=0")
a(f"; @launch kernel=ln_kernel grid=(512,1,1) block=(256,1,1) lds=0")
R = 4
def gemm_grid(N): return (N // 64) * (S // R) // 4
a(f"; @launch kernel=gq_kernel grid=({gemm_grid(3*D)},1,1) block=(256,1,1) lds=0")
a(f"; @launch kernel=gh_kernel grid=({gemm_grid(F)},1,1) block=(256,1,1) lds=0")
a(f"; @launch kernel=at_kernel grid=(256,1,1) block=(256,1,1) lds=0")
a(f"; @launch kernel=gs_kernel grid=({gemm_grid(D)},1,1) block=(256,1,1) lds=0")
a(f"; @launch kernel=gf_kernel grid=({gemm_grid(D)},1,1) block=(256,1,1) lds=0")
for i in range(EXTRA_EMPTY):
    a(f"; @launch kernel=empty_kernel grid=(256,1,1) block=(256,1,1) lds=0")
a('.amdgcn_target "amdgcn-amd-amdhsa--gfx950"')

def load_ptrs(a):
    a.e("s_load_dwordx8 s[4:11], s[0:1], 0")
    a.e("s_load_dwordx8 s[12:19], s[0:1], 32")
    a.e("s_load_dwordx2 s[20:21], s[0:1], 64")
    a.e("s_waitcnt lgkmcnt(0)")

def wave_sum(a, v, tmp, sdst):
    for off in (0x041F, 0x081F, 0x101F, 0x201F, 0x401F):
        a.e(f"ds_swizzle_b32 v{tmp}, v{v} offset:{off}")
        a.e("s_waitcnt lgkmcnt(0)")
        a.e(f"v_add_f32 v{v}, v{v}, v{tmp}")
    a.e("s_nop 1")
    a.e(f"v_readlane_b32 s{sdst}, v{v}, 32")
    a.e(f"v_readlane_b32 s{sdst+1}, v{v}, 0")
    a.e("s_nop 3")
    a.e(f"v_mov_b32 v{v}, s{sdst}")
    a.e(f"v_add_f32 v{v}, s{sdst+1}, v{v}")

def round_bf16(a, v):
    a.e(f"v_cvt_pk_bf16_f32 v{v}, v{v}, v{v}")
    a.e(f"v_lshlrev_b32 v{v}, 16, v{v}")

def silu(a, v, t):
    a.e(f"v_mul_f32 v{t}, 0xbfb8aa3b, v{v}")
    a.e(f"v_exp_f32 v{t}, v{t}")
    a.e("s_nop 0")
    a.e(f"v_add_f32 v{t}, 1.0, v{t}")
    a.e(f"v_rcp_f32 v{t}, v{t}")
    a.e("s_nop 0")
    a.e(f"v_mul_f32 v{v}, v{v}, v{t}")

kernel_begin(a, "ln_kernel")
a.e("s_cmp_ge_u32 s2, 512")
a.e("s_cbranch_scc1 ln_done")
load_ptrs(a)
srd(a, 24, 4, S*D*2)
srd(a, 28, 20, S*D*2, WS_XN)
a.e("v_lshrrev_b32 v1, 6, v0")
a.e("v_and_b32 v2, 63, v0")
a.e("s_lshl_b32 s3, s2, 2")
a.e("v_add_u32 v1, s3, v1")
a.e("v_mul_u32_u24 v1, 1280, v1")
a.e("v_lshl_add_u32 v1, v2, 2, v1")
for j in range(5):
    a.e(f"buffer_load_dword v{4+j}, v1, s[24:27], 0 offen offset:{256*j}")
a.e("s_waitcnt vmcnt(0)")
for j in range(5):
    a.e(f"v_lshlrev_b32 v{10+2*j}, 16, v{4+j}")
    a.e(f"v_and_b32 v{11+2*j}, 0xffff0000, v{4+j}")
a.e("v_mov_b32 v20, 0")
for j in range(10):
    a.e(f"v_add_f32 v20, v20, v{10+j}")
wave_sum(a, 20, 21, 32)
a.e(f"v_mul_f32 v20, 0x3acccccd, v20")
a.e("v_mov_b32 v22, 0")
for j in range(10):
    a.e(f"v_sub_f32 v21, v{10+j}, v20")
    a.e(f"v_fmac_f32 v22, v21, v21")
wave_sum(a, 22, 21, 32)
a.e(f"v_mul_f32 v22, 0x3acccccd, v22")
round_bf16(a, 20)
round_bf16(a, 22)
a.e("v_add_f32 v22, 0x3727c5ac, v22")
round_bf16(a, 22)
a.e("v_sqrt_f32 v22, v22")
a.e("s_nop 0")
round_bf16(a, 22)
a.e("v_rcp_f32 v22, v22")
a.e("s_nop 0")
for j in range(10):
    a.e(f"v_sub_f32 v{10+j}, v{10+j}, v20")
    if LN_MODE == "mimic":
        round_bf16(a, 10+j)
    a.e(f"v_mul_f32 v{10+j}, v{10+j}, v22")
for j in range(5):
    a.e(f"v_cvt_pk_bf16_f32 v{4+j}, v{10+2*j}, v{11+2*j}")
for j in range(5):
    a.e(f"buffer_store_dword v{4+j}, v1, s[28:31], 0 offen offset:{256*j}")
a.label("ln_done")
a.e("s_endpgm")

def gemm(name, N, K, a_ptr, a_add, a_bytes, b_ptr, b_bytes, epi, c_ptr, c_add, c_bytes):
    nwaves = (N // 64) * (S // R)
    ntile = N // 64
    kernel_begin(a, name)
    a.e(f"s_cmp_ge_u32 s2, {nwaves // 4}")
    a.e(f"s_cbranch_scc1 {name}_done")
    load_ptrs(a)
    srd(a, 24, a_ptr, a_bytes, a_add)
    srd(a, 28, b_ptr, b_bytes)
    srd(a, 36, c_ptr, c_bytes, c_add)
    a.e("v_lshrrev_b32 v1, 6, v0")
    a.e("s_nop 0")
    a.e("v_readfirstlane_b32 s3, v1")
    a.e("s_lshl_b32 s33, s2, 2")
    a.e("s_add_u32 s3, s3, s33")
    magic = (2**32 + ntile - 1) // ntile
    a.e(f"s_mul_hi_u32 s33, s3, {magic}")
    a.e(f"s_mul_i32 s34, s33, {ntile}")
    a.e("s_sub_u32 s34, s3, s34")
    a.e("v_and_b32 v2, 63, v0")
    a.e("s_lshl_b32 s34, s34, 6")
    a.e("v_add_u32 v2, s34, v2")
    a.e("v_lshlrev_b32 v3, 1, v2")
    a.e(f"s_mul_i32 s33, s33, {R}")
    a.e(f"s_mul_i32 s35, s33, {K*2}")
    a.e("v_mov_b32 v4, s35")
    for r in range(R): a.e(f"v_mov_b32 v{8+r}, 0")
    for j in range(8): a.e(f"v_mov_b32 v{40+j}, 0")
    a.e("s_mov_b32 s40, 0")
    a.label(f"{name}_loop")
    for r in range(R):
        a.e(f"v_add_u32 v5, {r*K*2}, v4")
        a.e(f"buffer_load_dwordx4 v[{16+4*r}:{19+4*r}], v5, s[24:27], 0 offen")
    for j in range(8):
        a.e(f"v_add_u32 v5, {j*N*2}, v3")
        a.e(f"buffer_load_short_d16_hi v{40+j}, v5, s[28:31], 0 offen")
    a.e("s_waitcnt vmcnt(0)")
    for r in range(R):
        for j in range(8):
            src = 16 + 4*r + j//2
            if j % 2 == 0: a.e(f"v_lshlrev_b32 v6, 16, v{src}")
            else: a.e(f"v_and_b32 v6, 0xffff0000, v{src}")
            a.e(f"v_fmac_f32 v{8+r}, v6, v{40+j}")
    a.e("v_add_u32 v4, 16, v4")
    a.e(f"v_add_u32 v3, {8*N*2}, v3")
    a.e("s_add_u32 s40, s40, 8")
    a.e(f"s_cmp_lt_u32 s40, {K}")
    a.e(f"s_cbranch_scc1 {name}_loop")
    a.e(f"s_mul_i32 s35, s33, {N*2}")
    a.e("v_lshlrev_b32 v3, 1, v2")
    a.e("v_add_u32 v3, s35, v3")
    if epi == "final":
        srd(a, 44, 20, S*D*2, WS_S)
        srd(a, 48, 4, S*D*2)
    for r in range(R):
        a.e(f"v_add_u32 v5, {r*N*2}, v3")
        v = 8 + r
        if epi == "plain":
            a.e(f"v_cvt_pk_bf16_f32 v{v}, v{v}, v{v}")
        elif epi == "silu":
            round_bf16(a, v); silu(a, v, 6)
            a.e(f"v_cvt_pk_bf16_f32 v{v}, v{v}, v{v}")
        elif epi == "final":
            a.e("v_mov_b32 v20, 0"); a.e("v_mov_b32 v21, 0")
            a.e("buffer_load_short_d16_hi v20, v5, s[44:47], 0 offen")
            a.e("buffer_load_short_d16_hi v21, v5, s[48:51], 0 offen")
            round_bf16(a, v); silu(a, v, 6); round_bf16(a, v)
            a.e("s_waitcnt vmcnt(0)")
            a.e(f"v_mul_f32 v{v}, v{v}, v20")
            round_bf16(a, v)
            a.e(f"v_add_f32 v{v}, v{v}, v21")
            if SCALE_OUT:
                import struct
                c = struct.unpack("<I", struct.pack("<f", 1.0 + SCALE_OUT))[0]
                a.e(f"v_mul_f32 v{v}, {c:#x}, v{v}")
            a.e(f"v_cvt_pk_bf16_f32 v{v}, v{v}, v{v}")
        a.e(f"buffer_store_short v{v}, v5, s[36:39], 0 offen")
    a.label(f"{name}_done")
    a.e("s_endpgm")

gemm("gq_kernel", 3*D, D, 20, WS_XN, S*D*2, 6, D*3*D*2, "plain", 20, WS_QKV, S*3*D*2)
gemm("gh_kernel", F, D, 20, WS_XN, S*D*2, 12, D*F*2, "silu", 20, WS_H, S*F*2)
gemm("gs_kernel", D, D, 20, WS_O, S*D*2, 8, D*D*2, "plain", 20, WS_S, S*D*2)
gemm("gf_kernel", D, F, 20, WS_H, S*F*2, 14, F*D*2, "final", 16, 0, S*D*2)

kernel_begin(a, "at_kernel")
a.e("s_cmp_ge_u32 s2, 256")
a.e("s_cbranch_scc1 at_done")
load_ptrs(a)
srd(a, 24, 20, S*3*D*2, WS_QKV)
srd(a, 28, 20, S*D*2, WS_O)
a.e("s_lshl_b32 s3, s2, 8")
a.e("v_add_u32 v1, s3, v0")
a.e("v_lshrrev_b32 v2, 5, v1")
a.e("v_and_b32 v3, 31, v1")
a.e("v_mul_u32_u24 v4, 40, v3")
a.e("v_mul_u32_u24 v5, 3840, v2")
a.e("v_add_u32 v5, v5, v4")
for j in range(5):
    a.e(f"buffer_load_dwordx2 v[{10+2*j}:{11+2*j}], v5, s[24:27], 0 offen offset:{8*j}")
a.e("s_waitcnt vmcnt(0)")
for j in range(10):
    a.e(f"v_lshlrev_b32 v{20+2*j}, 16, v{10+j}")
    a.e(f"v_and_b32 v{21+2*j}, 0xffff0000, v{10+j}")
for w in range(8):
    a.e(f"v_subrev_u32 v6, {2*w}, v2")
    a.e("v_cmp_le_i32 vcc, 0, v6")
    a.e("v_max_i32 v6, 0, v6")
    a.e("v_mul_u32_u24 v7, 3840, v6")
    a.e("v_add_u32 v7, v7, v4")
    for j in range(5):
        a.e(f"buffer_load_dwordx2 v[{10+2*j}:{11+2*j}], v7, s[24:27], 0 offen offset:{1280+8*j}")
    a.e("s_waitcnt vmcnt(0)")
    a.e(f"v_mov_b32 v{40+w}, 0")
    for j in range(10):
        a.e(f"v_lshlrev_b32 v8, 16, v{10+j}")
        a.e(f"v_fmac_f32 v{40+w}, v8, v{20+2*j}")
        a.e(f"v_and_b32 v8, 0xffff0000, v{10+j}")
        a.e(f"v_fmac_f32 v{40+w}, v8, v{21+2*j}")
    round_bf16(a, 40+w)
    a.e(f"v_mul_f32 v{40+w}, 0x3e64f92e, v{40+w}")
    round_bf16(a, 40+w)
    a.e(f"v_mov_b32 v8, 0xce6e6b28")
    a.e(f"v_cndmask_b32 v{40+w}, v8, v{40+w}, vcc")
a.e("v_mov_b32 v48, v40")
for w in range(1,8): a.e(f"v_max_f32 v48, v48, v{40+w}")
a.e("v_mov_b32 v49, 0")
for w in range(8):
    a.e(f"v_sub_f32 v{40+w}, v{40+w}, v48")
    a.e(f"v_mul_f32 v{40+w}, 0x3fb8aa3b, v{40+w}")
    a.e(f"v_exp_f32 v{40+w}, v{40+w}")
    a.e("s_nop 0")
    a.e(f"v_add_f32 v49, v49, v{40+w}")
a.e("v_rcp_f32 v49, v49")
a.e("s_nop 0")
for w in range(8):
    a.e(f"v_mul_f32 v{40+w}, v{40+w}, v49")
    round_bf16(a, 40+w)
for j in range(20): a.e(f"v_mov_b32 v{20+j}, 0")
for w in range(8):
    a.e(f"v_subrev_u32 v6, {2*w}, v2")
    a.e("v_max_i32 v6, 0, v6")
    a.e("v_mul_u32_u24 v7, 3840, v6")
    a.e("v_add_u32 v7, v7, v4")
    for j in range(5):
        a.e(f"buffer_load_dwordx2 v[{10+2*j}:{11+2*j}], v7, s[24:27], 0 offen offset:{2560+8*j}")
    a.e("s_waitcnt vmcnt(0)")
    for j in range(10):
        a.e(f"v_lshlrev_b32 v8, 16, v{10+j}")
        a.e(f"v_fmac_f32 v{20+2*j}, v8, v{40+w}")
        a.e(f"v_and_b32 v8, 0xffff0000, v{10+j}")
        a.e(f"v_fmac_f32 v{21+2*j}, v8, v{40+w}")
for j in range(10):
    a.e(f"v_cvt_pk_bf16_f32 v{10+j}, v{20+2*j}, v{21+2*j}")
a.e("v_mul_u32_u24 v5, 1280, v2")
a.e("v_add_u32 v5, v5, v4")
for j in range(5):
    a.e(f"buffer_store_dwordx2 v[{10+2*j}:{11+2*j}], v5, s[28:31], 0 offen offset:{8*j}")
a.label("at_done")
a.e("s_endpgm")

kernel_begin(a, "empty_kernel")
a.e("s_endpgm")

for k in ("ln_kernel","gq_kernel","gh_kernel","gs_kernel","gf_kernel","at_kernel","empty_kernel"):
    kernel_desc(a, k, 64, 64)
open(sys.argv[4] if len(sys.argv) > 4 else "cdna_kernels/" + NAME + ".s", "w").write(a.text())
```
